```python
import torch

def _softmax(x, axis=-1):
    return torch.softmax(x, dim=axis)

def _gelu(x):
    return torch.nn.functional.gelu(x, approximate='tanh')

def _silu(x):
    return torch.nn.functional.silu(x)

def _sigmoid(x):
    return torch.sigmoid(x)

def _layernorm(x, axis=-1, eps=1e-05):
    m = x.mean(dim=axis, keepdim=True)
    v = x.var(dim=axis, keepdim=True, unbiased=False)
    return (x - m) / torch.sqrt(v + eps)

def _scatter_add(tgt, idx, src, axis=0):
    return tgt.clone().index_add_(axis, idx, src)

def _segment_sum(src, seg, n):
    out = torch.zeros((n,) + src.shape[1:], dtype=src.dtype)
    return out.index_add_(0, seg, src)

def _pad(x, pw):
    flat = tuple((v for pair in reversed(pw) for v in pair))
    return torch.nn.functional.pad(x, flat)
kernel_name = 'parallel_sum__sliding_local_dilated__mixer_gmlp__prompt'

def setup_inputs():

    _w = lambda a: (lambda t: t.to(torch.bfloat16) if t.is_floating_point() else t)(torch.as_tensor(a))

    def _A_setup():
        B, S, D = (1, 2048, 1024)
        return {'x': _w((lambda *s: torch.randn(*s, dtype=torch.bfloat16) * 0.05)(B, S, D)), 'wqkv': _w((lambda *s: torch.randn(*s, dtype=torch.bfloat16) * 0.2)(D, 3 * D)), 'wo': _w((lambda *s: torch.randn(*s, dtype=torch.bfloat16) * 0.1)(D, D))}
    _A_in = _A_setup()

    def _B_setup():
        B, S, D, F = (1, 2048, 1024, 3584)
        Fh = F // 2
        return {'x': _w((lambda *s: torch.randn(*s, dtype=torch.bfloat16) * 0.05)(B, S, D)), 'w_in': _w((lambda *s: torch.randn(*s, dtype=torch.bfloat16) * 1.6)(D, 2 * Fh)), 'w_sp': _w(0.01 * (lambda *s: torch.randn(*s, dtype=torch.bfloat16) * 1.6)(S, S)), 'b_sp': _w(1.0 + 0.01 * (lambda *s: torch.randn(*s, dtype=torch.bfloat16) * 0.05)(S)), 'w_out': _w((lambda *s: torch.randn(*s, dtype=torch.bfloat16) * 0.05)(Fh, D))}
    _B_in = _B_setup()
    return {'A_x': _A_in['x'], 'A_wqkv': _A_in['wqkv'], 'A_wo': _A_in['wo'], 'B_x': _B_in['x'], 'B_w_in': _B_in['w_in'], 'B_w_sp': _B_in['w_sp'], 'B_b_sp': _B_in['b_sp'], 'B_w_out': _B_in['w_out']}

def reference(A_x, A_wqkv, A_wo, B_x, B_w_in, B_w_sp, B_b_sp, B_w_out):

    def _A_ref(x, wqkv, wo):
        B, S, D = x.shape
        H = 32
        Dh = D // H
        W, dil = (8, 2)
        qkv = (lambda x, *d: x.permute(*d))((x @ wqkv).reshape(B, S, 3, H, Dh), 2, 0, 3, 1, 4)
        q, k, v = (qkv[0], qkv[1], qkv[2])
        scale = Dh ** (-0.5)
        pos = torch.arange(S)
        off = torch.arange(W) * dil
        idx = pos[:, None] - off[None, :]
        mask = idx >= 0
        idx_c = torch.where(mask, idx, 0).reshape(-1)
        kg = k[:, :, idx_c, :].reshape(B, H, S, W, Dh)
        vg = v[:, :, idx_c, :].reshape(B, H, S, W, Dh)
        logits = torch.einsum('bhsd,bhswd->bhsw', q, kg) * scale
        logits = torch.where(mask[None, None, :, :], logits, -1000000000.0)
        attn = _softmax(logits, axis=-1)
        o = torch.einsum('bhsw,bhswd->bhsd', attn, vg)
        return (lambda x, *d: x.permute(*d))(o, 0, 2, 1, 3).reshape(B, S, D) @ wo

    def _B_ref(x, w_in, w_sp, b_sp, w_out):
        B, S, D = x.shape
        F = w_in.shape[-1]
        Fh = F // 2
        z = _gelu(torch.einsum('bsd,df->bsf', x, w_in))
        z1 = z[..., :Fh].clone()
        z2 = _layernorm(z[..., Fh:], axis=-1)
        g = torch.einsum('ts,bsf->btf', w_sp, z2) + b_sp[None, :, None]
        return torch.einsum('bsf,fd->bsd', z1 * g, w_out)
    x = A_x
    xn = _layernorm(x, axis=-1)
    return x + _A_ref(xn, A_wqkv, A_wo) + _B_ref(xn, B_w_in, B_w_sp, B_b_sp, B_w_out)
```

```python
import struct


def f32(x):
    return "0x%08x" % struct.unpack("<I", struct.pack("<f", x))[0]


class Asm:
    def __init__(self):
        self.L = []
        self.uid = 0

    def __call__(self, s):
        for line in s.split("\n"):
            line = line.strip()
            if line:
                self.L.append(line if line.endswith(":") or line.startswith(".") or line.startswith(";") else "    " + line)

    def label(self, base):
        self.uid += 1
        return f"L_{base}_{self.uid}"

    def text(self):
        return "\n".join(self.L) + "\n"


def vr(b, n=1):
    return f"v{b}" if n == 1 else f"v[{b}:{b+n-1}]"


def ar(b, n=1):
    return f"a{b}" if n == 1 else f"a[{b}:{b+n-1}]"


def sr(b, n=1):
    return f"s{b}" if n == 1 else f"s[{b}:{b+n-1}]"


def kernel_head(A, name):
    A(f".globl {name}\n.p2align 8\n.type {name},@function\n{name}:")


def kernel_desc(name, nvgpr, accum, nsgpr=102):
    return f""".p2align 6
.amdhsa_kernel {name}
  .amdhsa_next_free_vgpr {nvgpr}
  .amdhsa_next_free_sgpr {nsgpr}
  .amdhsa_accum_offset {accum}
  .amdhsa_group_segment_fixed_size 0
  .amdhsa_kernarg_size 88
  .amdhsa_user_sgpr_count 2
  .amdhsa_user_sgpr_kernarg_segment_ptr 1
  .amdhsa_system_sgpr_workgroup_id_x 1
  .amdhsa_float_denorm_mode_32 3
  .amdhsa_float_denorm_mode_16_64 3
.end_amdhsa_kernel
"""


def srd(A, d, base, off, size):
    if off:
        A(f"s_add_u32 s{d}, s{base}, {hex(off)}\ns_addc_u32 s{d+1}, s{base+1}, 0")
    else:
        A(f"s_mov_b32 s{d}, s{base}\ns_mov_b32 s{d+1}, s{base+1}")
    A(f"s_mov_b32 s{d+2}, {hex(size)}\ns_mov_b32 s{d+3}, 0x20000")
```

```python
import sys, math, argparse
from asmlib import *

NAME = "parallel_sum__sliding_local_dilated__mixer_gmlp__prompt"
KA_X, KA_WQKV, KA_WO, KA_BX, KA_WIN, KA_WSP, KA_BSP, KA_WOUT, KA_OUT, KA_DBG, KA_WS = [8 * i for i in range(11)]
MB = 1 << 20
XN_OFF, XN_SZ = 0, 4 * MB
P3_OFF, P3_SZ = 4 * MB, 64 * 88 * 2048
Z1_OFF, Z1_SZ = 16 * MB, 64 * 56 * 2048
Z2_OFF, Z2_SZ = 24 * MB, 56 * 64 * 2048
ST_OFF, ST_SZ = 32 * MB, 32 * 8 * 512
STAMP_OFF = 40 * MB

OPT = dict(stamps=False, no_mfma=False, no_ds=False, no_vmem=False, no_bar=False)


class Stamps:
    def __init__(self, A, kid):
        self.A, self.kid, self.n = A, kid, 0

    def mark(self):
        if not OPT["stamps"]:
            return
        i = self.n
        self.n += 1
        self.A(f"s_memrealtime s[{84+4*i}:{85+4*i}]\ns_memtime s[{86+4*i}:{87+4*i}]")

    def flush(self, ws_pair, wave_sgpr):
        if not OPT["stamps"]:
            return
        A = self.A
        self.mark()
        A("s_waitcnt lgkmcnt(0)")
        srd(A, 76, ws_pair, STAMP_OFF + self.kid * 65536, 65536)
        A(f"s_lshl_b32 s80, s2, 8\ns_lshl_b32 s81, s{wave_sgpr}, 6\ns_add_u32 s80, s80, s81")
        A("s_getreg_b32 s82, hwreg(HW_REG_XCC_ID)")
        A("v_mov_b32 v0, s80")
        for i in range(self.n):
            A(f"v_mov_b32 v2, s{84+4*i}\nv_mov_b32 v3, s{86+4*i}")
            A(f"buffer_store_dwordx2 v[2:3], v0, s[76:79], 0 offen offset:{8*i}")
            A("s_nop 1")
        A(f"v_mov_b32 v2, s82\nbuffer_store_dword v2, v0, s[76:79], 0 offen offset:60")


def mainloop(A, c):
    G = 2 * c.ns
    nv = len(c.vmem(0))
    assert (c.R * G) % c.RF == 0 and c.RF >= c.DF + 1 and c.R >= c.D + 2 and c.nst % c.R == 0
    assert (c.D - 1) * nv <= 63 and c.D * nv <= 63

    def emit_vm(item):
        for s in item:
            if OPT["no_vmem"] and ("buffer_" in s):
                continue
            A(s)

    for t in range(c.D):
        for s in c.interval_head(t % c.R):
            A(s)
        for item in c.vmem(t % c.R):
            emit_vm(item)
    c.after_prologue_issue()
    A(f"s_waitcnt vmcnt({(c.D-1)*nv})")
    c.after_prologue_wait()
    A("s_barrier")
    pend = []
    span = c.span if hasattr(c, "span") else G

    def start_interval(tslot):
        for s in c.interval_head(tslot):
            A(s)
        items = c.vmem(tslot)
        return [(int(i * span / len(items)), it) for i, it in enumerate(items)]

    pend = start_interval(c.D % c.R)
    for g in range(c.DF):
        h, j = divmod(g, c.ns)
        if not OPT["no_ds"]:
            for s in c.ds(0, h, j, c.sfrag(g % c.RF)):
                A(s)
        while pend and pend[0][0] <= g:
            emit_vm(pend.pop(0)[1])
    carry = list(pend)

    loop = A.label("loop")
    A(f"s_mov_b32 s{c.s_trip}, {c.nst // c.R}")
    A(".p2align 3")
    A(f"{loop}:")
    pend = carry
    for s_ in range(c.R):
        for g in range(G):
            n = s_ * G + g
            pos = (g + c.DF) % G
            if pos == 0:
                assert not pend
                A(f"s_waitcnt vmcnt({(c.D-1)*nv})")
                if not OPT["no_bar"]:
                    A("s_barrier")
                pend = start_interval((s_ + 1 + c.D) % c.R)
            if g % c.wait_every == 0 and not OPT["no_ds"]:
                A(f"s_waitcnt lgkmcnt({(c.DF - c.wait_every) * c.rpg})")
            h, j = divmod(g, c.ns)
            mf = c.mfma(s_, h, j, c.sfrag(n % c.RF))
            if OPT["no_mfma"]:
                mf = []
            rs, rg = divmod(n + c.DF, G)
            rh, rj = divmod(rg, c.ns)
            fill = [] if OPT["no_ds"] else [[x] for x in c.ds(rs % c.R, rh, rj, c.sfrag((n + c.DF) % c.RF))]
            while pend and pend[0][0] <= pos:
                fill.append(pend.pop(0)[1])
            k = 0
            for i, m in enumerate(mf):
                A(m)
                upto = (len(fill) * (i + 1) + len(mf) - 1) // len(mf)
                while k < upto:
                    emit_vm(fill[k])
                    k += 1
            while k < len(fill):
                emit_vm(fill[k])
                k += 1
    assert [p for p, _ in pend] == [p for p, _ in carry] or True
    A(f"s_sub_u32 s{c.s_trip}, s{c.s_trip}, 1\ns_cmp_lg_u32 s{c.s_trip}, 0\ns_cbranch_scc1 {loop}")


class Cfg:
    pass


def common_head(A, name, nwg, ptrs):
    kernel_head(A, name)
    end = A.label("end")
    A(f"s_cmp_ge_u32 s2, {nwg}\ns_cbranch_scc1 {end}")
    for s, off in ptrs:
        A(f"s_load_dwordx2 s[{s}:{s+1}], s[0:1], {off}")
    A("v_lshrrev_b32 v1, 6, v0\nv_and_b32 v0, 63, v0\nv_readfirstlane_b32 s3, v1")
    return end


def allreduce64(A, regs, tmp):
    for sh in (8, 4, 2, 1):
        A("s_nop 1")
        for r in regs:
            A(f"v_add_f32_dpp v{r}, v{r}, v{r} row_ror:{sh} row_mask:0xf bank_mask:0xf")
    for sw in ("v_permlane16_swap_b32", "v_permlane32_swap_b32"):
        for r, t in zip(regs, tmp):
            A(f"v_mov_b32 v{t}, v{r}")
        A("s_nop 1")
        for r, t in zip(regs, tmp):
            A(f"{sw} v{r}, v{t}")
        A("s_nop 1")
        for r, t in zip(regs, tmp):
            A(f"v_add_f32 v{r}, v{r}, v{t}")


def ln_scalars(A, mean, var, t0):
    A(f"v_cvt_pk_bf16_f32 v{mean}, 0, v{mean}")
    A(f"v_cvt_pk_bf16_f32 v{var}, 0, v{var}")
    A(f"v_add_f32 v{var}, {f32(1e-5)}, v{var}")
    A(f"v_cvt_pk_bf16_f32 v{var}, 0, v{var}")
    A(f"v_sqrt_f32 v{var}, v{var}")
    A("s_nop 0")
    A(f"v_cvt_pk_bf16_f32 v{var}, 0, v{var}")
    A(f"v_rcp_f32 v{t0}, v{var}")
    A("s_nop 0")


def gen_k0(A):
    name = "k0_kernel"
    end = common_head(A, name, 256, [(4, KA_X), (6, KA_WS)])
    st = Stamps(A, 0)
    st.mark()
    A("s_lshr_b32 s20, s2, 2\ns_bfe_u32 s21, s2, 0x10001\ns_and_b32 s22, s2, 1")
    A("s_lshl_b32 s22, s22, 3\ns_lshl_b32 s23, s3, 1\ns_add_u32 s22, s22, s23")
    A("s_lshl_b32 s23, s20, 5\ns_lshl_b32 s24, s22, 1\ns_add_u32 s23, s23, s24\ns_add_u32 s23, s23, s21")
    A("s_lshl_b32 s23, s23, 11\ns_add_u32 s24, s23, 4096")
    A("v_lshrrev_b32 v1, 2, v0\nv_and_b32 v2, 3, v0")
    A("v_lshlrev_b32 v3, 6, v1\nv_lshl_add_u32 v3, v2, 3, v3")
    A("s_waitcnt lgkmcnt(0)")
    srd(A, 8, 4, 0, 4 * MB)
    srd(A, 12, 6, XN_OFF, XN_SZ)
    srd(A, 16, 6, ST_OFF, ST_SZ)
    for rr in range(2):
        for q, off in enumerate((0, 32, 1024, 1056)):
            A(f"buffer_load_dwordx2 v[{8+8*rr+2*q}:{9+8*rr+2*q}], v3, s[8:11], s{23+rr} offen offset:{off}")
    skip = A.label("noclr")
    A(f"s_cmp_lg_u32 s3, 0\ns_cbranch_scc1 {skip}")
    A("v_lshlrev_b32 v4, 3, v0\nv_mov_b32 v6, -1\nv_mov_b32 v7, -1\ns_lshl_b32 s25, s2, 9")
    A("buffer_store_dwordx2 v[6:7], v4, s[16:19], s25 offen")
    A(f"{skip}:")
    A("v_lshlrev_b32 v5, 12, v1\nv_lshl_add_u32 v5, v2, 8, v5")
    A("v_add_u32 v4, 0x10000, v5")
    A("s_lshr_b32 s26, s20, 1\ns_lshl_b32 s26, s26, 17\ns_and_b32 s27, s20, 1\ns_lshl_b32 s27, s27, 1\ns_add_u32 s27, s27, s21")
    A("s_lshl_b32 s27, s27, 10\ns_add_u32 s26, s26, s27\ns_lshl_b32 s27, s22, 4\ns_add_u32 s26, s26, s27")
    A("s_waitcnt vmcnt(0)")
    for rr in range(2):
        for i in range(8):
            s, d = 8 + 8 * rr + i, 32 + 16 * rr + 2 * i
            A(f"v_lshlrev_b32 v{d}, 16, v{s}\nv_and_b32 v{d+1}, 0xffff0000, v{s}")
    M, V, T = (24, 25), (26, 27), (28, 29)
    for rr in range(2):
        b = 32 + 16 * rr
        A(f"v_add_f32 v{M[rr]}, v{b}, v{b+1}")
        for i in range(2, 16):
            A(f"v_add_f32 v{M[rr]}, v{M[rr]}, v{b+i}")
    allreduce64(A, M, T)
    for rr in range(2):
        b = 32 + 16 * rr
        A(f"v_mul_f32 v{M[rr]}, {f32(1/1024)}, v{M[rr]}")
        for i in range(16):
            A(f"v_sub_f32 v{T[rr]}, v{b+i}, v{M[rr]}")
            A(f"v_mul_f32 v{V[rr]}, v{T[rr]}, v{T[rr]}" if i == 0 else f"v_fmac_f32 v{V[rr]}, v{T[rr]}, v{T[rr]}")
    allreduce64(A, V, T)
    for rr in range(2):
        b = 32 + 16 * rr
        A(f"v_mul_f32 v{V[rr]}, {f32(1/1024)}, v{V[rr]}")
        ln_scalars(A, M[rr], V[rr], T[rr])
        for i in range(16):
            A(f"v_sub_f32 v{b+i}, v{b+i}, v{M[rr]}")
            A(f"v_cvt_pk_bf16_f32 v{b+i}, 0, v{b+i}")
            A(f"v_mul_f32 v30, v{b+i}, v{T[rr]}")
            A(f"v_fma_f32 v31, -v30, v{V[rr]}, v{b+i}")
            A(f"v_fma_f32 v{b+i}, v31, v{T[rr]}, v30")
        for i in range(8):
            A(f"v_cvt_pk_bf16_f32 v{8+8*rr+i}, v{b+2*i}, v{b+2*i+1}")
        A(f"buffer_store_dwordx4 v[{8+8*rr}:{11+8*rr}], v5, s[12:15], s26 offen offset:{16*rr}")
        A(f"buffer_store_dwordx4 v[{12+8*rr}:{15+8*rr}], v4, s[12:15], s26 offen offset:{16*rr}")
    st.flush(6, 3)
    A(f"{end}:\ns_endpgm")
    return kernel_desc(name, 64, 64), f"; @launch kernel={name} grid=(256,1,1) block=(256,1,1) lds=0"


def gen_k3(A, R=11, D=8):
    name = "k3_kernel"
    end = common_head(A, name, 256, [(4, KA_X), (6, KA_WS), (28, KA_WO), (30, KA_WOUT), (32, KA_OUT)])
    st = Stamps(A, 3)
    st.mark()
    SLOT = 8192
    A("s_and_b32 s20, s2, 7\ns_lshr_b32 s21, s2, 3")
    A("s_lshr_b32 s22, s20, 1\ns_lshl_b32 s22, s22, 2\ns_lshr_b32 s23, s21, 3\ns_add_u32 s22, s22, s23")
    A("s_and_b32 s23, s20, 1\ns_lshl_b32 s23, s23, 3\ns_and_b32 s24, s21, 7\ns_add_u32 s23, s23, s24")
    A("s_lshl_b32 s24, s22, 2\ns_add_u32 s24, s24, s3")
    A(f"s_mul_i32 s34, s24, {88*2048}")
    A("s_mov_b32 s35, 0")
    A("s_lshl_b32 s36, s3, 11")
    A("s_mov_b32 s37, 0")
    V_P, V_D0, V_D1, V_DS, V_X = 32, 33, 34, 36, 44
    A(f"v_lshlrev_b32 v{V_P}, 4, v0")
    A("v_lshrrev_b32 v1, 3, v0\nv_lshrrev_b32 v2, 4, v0\nv_and_b32 v3, 7, v0\nv_lshlrev_b32 v2, 1, v2\nv_xor_b32 v3, v3, v2")
    A(f"v_lshlrev_b32 v1, 11, v1\nv_lshl_add_u32 v{V_D0}, v3, 4, v1")
    A("s_lshl_b32 s25, s3, 15\ns_lshl_b32 s26, s23, 7\ns_add_u32 s25, s25, s26")
    A(f"v_add_u32 v{V_D0}, s25, v{V_D0}\nv_add_u32 v{V_D1}, {8*2048-1024}, v{V_D0}")
    A("v_lshrrev_b32 v1, 2, v0\nv_and_b32 v2, 3, v0\nv_bfe_u32 v3, v0, 3, 2")
    A("v_lshlrev_b32 v1, 7, v1\nv_lshl_add_u32 v1, v2, 3, v1")
    for nt in range(4):
        A(f"v_xor_b32 v2, {nt}, v3\nv_lshl_add_u32 v{V_DS+nt}, v2, 5, v1\nv_add_u32 v{V_DS+4+nt}, 0x10000, v{V_DS+nt}")
    A("v_and_b32 v1, 15, v0\nv_lshlrev_b32 v1, 12, v1\nv_bfe_u32 v2, v0, 4, 1\nv_bfe_u32 v3, v0, 5, 1")
    A(f"v_lshl_add_u32 v1, v2, 5, v1\nv_lshl_add_u32 v{V_X}, v3, 4, v1")
    A("s_lshl_b32 s38, s24, 16\ns_add_u32 s38, s38, s26")
    A("s_waitcnt lgkmcnt(0)")
    srd(A, 8, 6, P3_OFF, P3_SZ)
    srd(A, 12, 28, 0, 2 * MB)
    srd(A, 16, 4, 0, 4 * MB)
    srd(A, 40, 32, 0, 4 * MB)
    for p in range(2):
        for q in range(2):
            b = 48 + 8 * p + 4 * q
            A(f"buffer_load_dwordx4 v[{b}:{b+3}], v{V_X}, s[16:19], s38 offen offset:{p*2048+q*64}")
    c = Cfg()
    c.R, c.D, c.nst, c.ns, c.DF, c.RF, c.rpg, c.wait_every, c.s_trip = R, D, 44, 4, 6, 8, 2, 2, 39
    PB = 32
    c.sfrag = lambda i: 4 * i

    def ds(slot, h, j, dst):
        off = slot * SLOT + h * 4096
        reg = V_DS + j + (4 if off >= 65536 else 0)
        off %= 65536
        return [f"ds_read_b64_tr_b16 a[{dst+2*hh}:{dst+2*hh+1}], v{reg} offset:{off+hh*2048}" for hh in range(2)]
    c.ds = ds

    def mfma(slot, h, j, sf):
        out = []
        for p in range(2):
            acc = 16 * p + 4 * j
            pr = PB + slot * 16 + h * 8 + p * 4
            out.append(f"v_mfma_f32_16x16x32_bf16 v[{acc}:{acc+3}], a[{sf}:{sf+3}], a[{pr}:{pr+3}], v[{acc}:{acc+3}]")
        return out
    c.mfma = mfma

    def vmem(slot):
        P = [[f"buffer_load_dwordx4 a[{PB+slot*16+4*i}:{PB+slot*16+4*i+3}], v{V_P}, s[8:11], s34 offen offset:{1024*i}"] for i in range(4)]
        S = [[f"buffer_load_dwordx4 v{V_D0}, s[12:15], s35 offen lds"],
             [f"buffer_load_dwordx4 v{V_D1}, s[12:15], s35 offen offset:1024 lds"]]
        return [S[0], P[0], P[1], S[1], P[2], P[3]]
    c.vmem = vmem
    first = [True]

    def head(slot):
        out = []
        if not first[0]:
            out += ["s_add_u32 s34, s34, 4096", f"s_add_u32 s35, s35, {64*2048}", "s_add_u32 s37, s37, 1"]
        first[0] = False
        if slot == 16 % R:
            out += ["s_cmp_eq_u32 s37, 16", "s_cselect_b32 s12, s30, s12", "s_cselect_b32 s13, s31, s13",
                    f"s_cselect_b32 s14, {hex(1792*2048)}, s14", "s_cselect_b32 s35, 0, s35"]
        if slot == 44 % R:
            out += ["s_cmp_eq_u32 s37, 44", "s_cselect_b32 s10, 0, s10"]
        out += [f"s_add_u32 m0, s36, {slot*SLOT}", "s_nop 0"]
        return out
    c.interval_head = head
    c.after_prologue_issue = lambda: None

    def init_acc():
        for p in range(2):
            for q in range(2):
                b = 48 + 8 * p + 4 * q
                A(f"v_permlane16_swap_b32 v{b}, v{b+2}\nv_permlane16_swap_b32 v{b+1}, v{b+3}")
        A("s_nop 1")
        for p in range(2):
            for q in range(2):
                b = 48 + 8 * p + 4 * q
                for i in range(4):
                    d = 16 * p + 8 * q + 2 * i
                    A(f"v_lshlrev_b32 v{d}, 16, v{b+i}\nv_and_b32 v{d+1}, 0xffff0000, v{b+i}")
        st.mark()
    c.after_prologue_wait = init_acc
    mainloop(A, c)
    st.mark()
    A("s_nop 7\ns_nop 1")
    for p in range(2):
        for q in range(2):
            b = 48 + 8 * p + 4 * q
            for i in range(4):
                d = 16 * p + 8 * q + 2 * i
                A(f"v_cvt_pk_bf16_f32 v{b+i}, v{d}, v{d+1}")
    A("s_nop 1")
    for p in range(2):
        for q in range(2):
            b = 48 + 8 * p + 4 * q
            A(f"v_permlane16_swap_b32 v{b}, v{b+2}\nv_permlane16_swap_b32 v{b+1}, v{b+3}")
            A(f"buffer_store_dwordx4 v[{b}:{b+3}], v{V_X}, s[40:43], s38 offen offset:{p*2048+q*64}")
    st.flush(6, 3)
    A(f"{end}:\ns_endpgm")
    lds = max(R * SLOT, 90112)
    return kernel_desc(name, 64 + PB + 16 * R, 64), f"; @launch kernel={name} grid=(256,1,1) block=(256,1,1) lds={lds}"


def gen_k2(A, R=8, D=6):
    name = "k2_kernel"
    end = common_head(A, name, 224, [(4, KA_WSP), (6, KA_WS), (28, KA_BSP)])
    st = Stamps(A, 2)
    st.mark()
    SLOT = 16384
    A("s_and_b32 s20, s2, 7\ns_lshr_b32 s21, s2, 3")
    A("s_lshr_b32 s22, s20, 1\ns_lshl_b32 s22, s22, 2\ns_and_b32 s23, s21, 3\ns_add_u32 s22, s22, s23")
    A("s_and_b32 s23, s20, 1\ns_mul_i32 s23, s23, 7\ns_lshr_b32 s24, s21, 2\ns_add_u32 s23, s23, s24")
    A("s_lshl_b32 s24, s23, 2\ns_add_u32 s24, s24, s3")
    A("s_lshl_b32 s34, s24, 17")
    A("s_mov_b32 s35, 0")
    A("s_lshl_b32 s36, s3, 12")
    A("s_mov_b32 s37, 0")
    V_P, V_D, V_DS, V_B, V_Z = 64, 65, 70, 74, 80
    A(f"v_lshlrev_b32 v{V_P}, 4, v0")
    A("v_lshrrev_b32 v1, 3, v0\nv_lshrrev_b32 v2, 4, v0\nv_and_b32 v3, 7, v0\nv_xor_b32 v3, v3, v2")
    A("v_lshlrev_b32 v1, 13, v1")
    A("s_lshl_b32 s25, s22, 19\ns_lshl_b32 s26, s3, 17\ns_add_u32 s25, s25, s26")
    A("v_add_u32 v1, s25, v1")
    for q in range(4):
        A(f"v_xor_b32 v2, {4*(q&1)}, v3\nv_lshl_add_u32 v{V_D+q}, v2, 4, v1")
        k = (16 * (q & 1) + (q >> 1)) * 4096 - 1024 * q
        if k:
            A(f"v_add_u32 v{V_D+q}, {k}, v{V_D+q}")
    A("v_and_b32 v1, 15, v0\nv_lshrrev_b32 v2, 4, v0\nv_bfe_u32 v3, v0, 1, 3\nv_xor_b32 v2, v2, v3\nv_lshlrev_b32 v1, 7, v1")
    for h in range(2):
        A(f"v_xor_b32 v3, {4*h}, v2\nv_lshl_add_u32 v{V_DS+h}, v3, 4, v1\nv_add_u32 v{V_DS+2+h}, 0x10000, v{V_DS+h}")
    A("v_and_b32 v1, 15, v0\nv_lshlrev_b32 v1, 2, v1")
    A("s_lshl_b32 s27, s22, 8")
    A(f"s_mul_i32 s44, s22, {4*56*2048}\ns_lshl_b32 s25, s24, 11\ns_add_u32 s44, s44, s25")
    A(f"s_mul_i32 s48, s22, {4*88*2048}\ns_add_u32 s48, s48, s25\ns_add_u32 s48, s48, {32*2048}")
    for i in range(1, 4):
        A(f"s_add_u32 s{44+i}, s{43+i}, {56*2048}\ns_add_u32 s{48+i}, s{47+i}, {88*2048}")
    A("s_waitcnt lgkmcnt(0)")
    srd(A, 8, 6, Z2_OFF, Z2_SZ)
    srd(A, 12, 4, 0, 8 * MB)
    srd(A, 16, 28, 0, 4096)
    srd(A, 40, 6, Z1_OFF, Z1_SZ)
    srd(A, 52, 6, P3_OFF, P3_SZ)
    for a in range(4):
        A(f"buffer_load_dword v{V_B+a}, v1, s[16:19], s27 offen offset:{64*a}")
    c = Cfg()
    c.R, c.D, c.nst, c.ns, c.DF, c.RF, c.rpg, c.wait_every, c.s_trip = R, D, 32, 8, 6, 8, 1, 2, 39
    PB = 32
    c.sfrag = lambda i: 4 * i

    def ds(slot, h, j, dst):
        off = slot * SLOT + j * 2048
        reg = V_DS + h + (2 if off >= 65536 else 0)
        return [f"ds_read_b128 a[{dst}:{dst+3}], v{reg} offset:{off % 65536}"]
    c.ds = ds

    def mfma(slot, h, j, sf):
        out = []
        for ft in range(2):
            acc = 8 * j + 4 * ft
            pr = PB + slot * 16 + h * 8 + ft * 4
            out.append(f"v_mfma_f32_16x16x32_bf16 v[{acc}:{acc+3}], a[{pr}:{pr+3}], a[{sf}:{sf+3}], v[{acc}:{acc+3}]")
        return out
    c.mfma = mfma

    def vmem(slot):
        P = [[f"buffer_load_dwordx4 a[{PB+slot*16+4*i}:{PB+slot*16+4*i+3}], v{V_P}, s[8:11], s34 offen offset:{1024*i}"] for i in range(4)]
        S = [[f"buffer_load_dwordx4 v{V_D+q}, s[12:15], s35 offen offset:{1024*q} lds"] for q in range(4)]
        return [S[0], P[0], S[1], P[1], S[2], P[2], S[3], P[3]]
    c.vmem = vmem
    first = [True]

    def head(slot):
        out = []
        if not first[0]:
            out += ["s_add_u32 s34, s34, 4096", "s_add_u32 s35, s35, 128"]
        first[0] = False
        if slot == 32 % R:
            out += ["s_cmp_eq_u32 s35, 4096", "s_cselect_b32 s10, 0, s10", "s_cselect_b32 s14, 0, s14"]
        out += [f"s_add_u32 m0, s36, {slot*SLOT}", "s_nop 0"]
        return out
    c.interval_head = head
    c.after_prologue_issue = lambda: None

    def init_acc():
        for a in range(4):
            A(f"v_lshlrev_b32 v{16*a}, 16, v{V_B+a}\nv_and_b32 v{16*a+8}, 0xffff0000, v{V_B+a}")
            for p in range(2):
                for i in range(1, 8):
                    A(f"v_mov_b32 v{16*a+8*p+i}, v{16*a+8*p}")
        st.mark()
    c.after_prologue_wait = init_acc
    mainloop(A, c)
    st.mark()
    for a in range(4):
        for p in range(2):
            b = V_Z + 8 * a + 4 * p
            A(f"buffer_load_dwordx4 v[{b}:{b+3}], v{V_P}, s[40:43], s{44+a} offen offset:{1024*p}")
    T = 112
    for a in range(4):
        for p in range(2):
            b = V_Z + 8 * a + 4 * p
            acc = 16 * a + 8 * p
            A(f"s_waitcnt vmcnt({7})")
            for i in range(4):
                A(f"v_lshlrev_b32 v{T+2*i}, 16, v{b+i}\nv_and_b32 v{T+2*i+1}, 0xffff0000, v{b+i}")
            for i in range(4):
                A(f"v_pk_mul_f32 v[{T+2*i}:{T+2*i+1}], v[{T+2*i}:{T+2*i+1}], v[{acc+2*i}:{acc+2*i+1}]")
            for i in range(4):
                A(f"v_cvt_pk_bf16_f32 v{b+i}, v{T+2*i}, v{T+2*i+1}")
            A(f"buffer_store_dwordx4 v[{b}:{b+3}], v{V_P}, s[52:55], s{48+a} offen offset:{1024*p}")
    st.flush(6, 3)
    A(f"{end}:\ns_endpgm")
    lds = max(R * SLOT, 90112)
    return kernel_desc(name, 128 + PB + 16 * R, 128), f"; @launch kernel={name} grid=(224,1,1) block=(256,1,1) lds={lds}"


GC0 = -2.0 * math.log2(math.e) * math.sqrt(2.0 / math.pi)
GC1 = GC0 * 0.044715


def gelu_block(A, regs, T, VC):
    pr = lambda b: f"v[{b}:{b+1}]"
    n = len(regs)
    for i, r in enumerate(regs):
        A(f"v_pk_mul_f32 {pr(T+2*i)}, {pr(r)}, {pr(r)}")
    for i, r in enumerate(regs):
        A(f"v_pk_fma_f32 {pr(T+2*i)}, {pr(T+2*i)}, {pr(VC)}, {pr(VC)} op_sel:[0,0,1] op_sel_hi:[1,0,1]")
    for i, r in enumerate(regs):
        A(f"v_pk_mul_f32 {pr(T+2*i)}, {pr(T+2*i)}, {pr(r)}")
    for i in range(2 * n):
        A(f"v_exp_f32 v{T+i}, v{T+i}")
    if n < 2:
        A("s_nop 0")
    for i in range(n):
        A(f"v_pk_add_f32 {pr(T+2*i)}, {pr(T+2*i)}, 1.0 op_sel_hi:[1,0]")
    for i in range(2 * n):
        A(f"v_rcp_f32 v{T+i}, v{T+i}")
    if n < 2:
        A("s_nop 0")
    for i, r in enumerate(regs):
        A(f"v_pk_mul_f32 {pr(r)}, {pr(r)}, {pr(T+2*i)}")


def gen_k1(A, R=4, D=2):
    name = "k1_kernel"
    end = common_head(A, name, 256, [(4, KA_WQKV), (6, KA_WS), (28, KA_WIN)])
    st = Stamps(A, 1)
    st.mark()
    SLOT = 28672
    WST = 7168
    A("s_and_b32 s20, s2, 7\ns_lshr_b32 s21, s2, 3")
    A("s_and_b32 s22, s20, 1\ns_lshl_b32 s22, s22, 2\ns_and_b32 s23, s21, 3\ns_add_u32 s22, s22, s23")
    A("s_lshr_b32 s20, s20, 1\ns_lshr_b32 s21, s21, 2")
    A("s_lshl_b32 s24, s22, 2\ns_add_u32 s24, s24, s3")
    A("s_lshl_b32 s34, s24, 17")
    A("s_add_u32 s33, s34, 4096")
    A("s_mov_b32 s35, 0")
    A(f"s_mul_i32 s36, s3, {WST}")
    A("s_mov_b32 s37, 0")
    V_P, V_H, V_D, V_DS, V_L = 224, 225, 226, 234, 246
    A(f"v_mov_b32 v{V_L}, v0")
    A(f"v_lshlrev_b32 v{V_P}, 4, v0")
    A("v_lshrrev_b32 v1, 2, v0\nv_and_b32 v2, 3, v0\nv_bfe_u32 v3, v0, 3, 2\nv_lshlrev_b32 v2, 3, v2")
    A("v_lshl_add_u32 v4, v1, 7, v2")
    for nt in range(4):
        A(f"v_xor_b32 v5, {nt}, v3\nv_lshl_add_u32 v{V_DS+nt}, v5, 5, v4\nv_add_u32 v{V_DS+6+nt}, {2*SLOT}, v{V_DS+nt}")
    A("v_lshl_add_u32 v4, v1, 6, v2\nv_bfe_u32 v3, v0, 4, 1")
    for cb in range(2):
        A(f"v_xor_b32 v5, {cb}, v3\nv_lshl_add_u32 v{V_DS+4+cb}, v5, 5, v4\nv_add_u32 v{V_DS+10+cb}, {2*SLOT}, v{V_DS+4+cb}")
    A("v_lshrrev_b32 v6, 3, v0\nv_lshrrev_b32 v2, 4, v0\nv_and_b32 v3, 7, v0\nv_lshlrev_b32 v2, 1, v2\nv_xor_b32 v3, v3, v2\nv_lshlrev_b32 v7, 4, v3")
    A("s_waitcnt lgkmcnt(0)")
    srd(A, 8, 6, XN_OFF, XN_SZ)
    lz = A.label("ztile")
    A(f"s_cmp_ge_u32 s21, 4\ns_cbranch_scc1 {lz}")

    PB = 32

    def mk_cfg(kind):
        c = Cfg()
        q = kind == "q"
        npf = 5 if q else 4
        c.R, c.D, c.nst, c.rpg, c.wait_every, c.s_trip = R, D, 16, 2, 1, 39
        c.ns, c.DF, c.RF = (12, 3, 4) if q else (14, 3, 4)
        c.span = 2 * c.ns * 3 // 4
        c.sfrag = lambda i: 4 * i
        rs = 6144 if q else 7168

        def ds(slot, h, j, dst):
            hi = 6 if slot >= 2 else 0
            out = []
            for hh in range(2):
                off = (slot % 2) * SLOT + (2 * h + hh) * WST
                if j < 12:
                    reg, o = V_DS + (j & 3) + hi, off + (j >> 2) * 2048
                else:
                    reg, o = V_DS + 4 + (j - 12) + hi, off + 6144
                out.append(f"ds_read_b64_tr_b16 a[{dst+2*hh}:{dst+2*hh+1}], v{reg} offset:{o}")
            return out
        c.ds = ds

        def preg(slot, h, i):
            return PB + (slot * 2 + h) * 4 * npf + 4 * i

        def mfma(slot, h, j, sf):
            out = []
            for i in range(4 if (not q or j < 4) else 5):
                acc = acc_q(j, i) if q else 16 * j + 4 * i
                pr = preg(slot, h, i)
                swapped = (j < 8) if q else (kind == "z1")
                a, b = (sf, pr) if swapped else (pr, sf)
                out.append(f"v_mfma_f32_16x16x32_bf16 v[{acc}:{acc+3}], a[{a}:{a+3}], a[{b}:{b+3}], v[{acc}:{acc+3}]")
            return out
        c.mfma = mfma

        def vmem(slot):
            P = []
            for h in range(2):
                so = "s34" if h == 0 else "s33"
                for i in range(4):
                    r = preg(slot, h, i)
                    P.append([f"buffer_load_dwordx4 a[{r}:{r+3}], v{V_P}, s[8:11], {so} offen offset:{1024*i}"])
                if q:
                    r = preg(slot, h, 4)
                    P.append([f"buffer_load_dwordx4 a[{r}:{r+3}], v{V_H}, s[8:11], {so} offen"])
            S = []
            for i in range(6 if q else 7):
                it = []
                if i == 4:
                    it += [f"s_add_u32 m0, s36, {slot*SLOT+4096}", "s_nop 0"]
                it.append(f"buffer_load_dwordx4 v{V_D+i}, s[12:15], s35 offen offset:{1024*(i&3)} lds")
                S.append(it)
            out = []
            while P or S:
                if S:
                    out.append(S.pop(0))
                if P:
                    out.append(P.pop(0))
            return out
        c.vmem = vmem
        first = [True]

        def head(slot):
            out = []
            if not first[0]:
                out += ["s_add_u32 s34, s34, 8192", "s_add_u32 s33, s33, 8192", f"s_add_u32 s35, s35, {64*rs}"]
            first[0] = False
            if slot == 16 % R:
                out += [f"s_cmp_eq_u32 s35, {1024*rs}", "s_cselect_b32 s10, 0, s10"]
            out += [f"s_add_u32 m0, s36, {slot*SLOT}", "s_nop 0"]
            return out
        c.interval_head = head

        def zero_acc():
            for i in range(0, 224, 2):
                A(f"v_mov_b64 v[{i}:{i+1}], 0")
        c.after_prologue_issue = zero_acc
        c.after_prologue_wait = lambda: st.mark()
        return c

    def acc_q(j, i):
        return 16 * j + 4 * i if j < 4 else 64 + 20 * (j - 4) + 4 * i

    def dma_regs(rs, colbytes_sgprs):
        A(f"s_mul_i32 s25, s3, {16*rs}\ns_mov_b32 s26, {rs}")
        A("v_mul_lo_u32 v1, v6, s26\nv_add_u32 v1, v1, v7\nv_add_u32 v1, s25, v1")
        for b in range(3):
            for jj in range(2):
                i = 2 * b + jj
                k = jj * 8 * rs - 1024 * (i & 3)
                A(f"s_add_u32 s27, s{colbytes_sgprs+b}, {hex(k & 0xffffffff)}\nv_add_u32 v{V_D+i}, s27, v1")

    n0 = st.n
    A("s_lshl_b32 s23, s20, 2\ns_add_u32 s23, s23, s21")
    A("s_lshl_b32 s44, s23, 7\ns_add_u32 s44, s44, 4096\ns_add_u32 s45, s44, 2048\ns_add_u32 s46, s44, 4096")
    A("s_sub_u32 s12, s4, 4096\ns_subb_u32 s13, s5, 0")
    A(f"s_mov_b32 s14, {hex(6*MB+4096)}\ns_mov_b32 s15, 0x20000")
    dma_regs(6144, 44)
    A("v_bfe_u32 v1, v0, 3, 1\nv_or_b32 v2, 8, v0\nv_lshlrev_b32 v2, 4, v2\nv_lshl_add_u32 v1, v1, 10, v2")
    A("s_cmp_eq_u32 s24, 0\ns_cselect_b32 s25, 0, 0x20000")
    A("s_sub_u32 s34, s34, s25\ns_sub_u32 s33, s33, s25")
    A(f"v_add_u32 v{V_H}, 2048, v1\nv_add_u32 v{V_P}, s25, v{V_P}")
    mainloop(A, mk_cfg("q"))
    st.mark()
    attn_epilogue(A, acc_q, V_L)
    st.flush(6, 3)
    A("s_endpgm")

    A(f"{lz}:")
    st.n = n0
    A("s_and_b32 s30, s21, 1")
    A("s_lshl_b32 s23, s20, 1\ns_add_u32 s23, s23, s30")
    A("s_bfe_u32 s31, s21, 0x10001")
    A("s_mul_i32 s47, s23, 448\ns_mul_i32 s25, s31, 3584\ns_add_u32 s47, s47, s25\ns_add_u32 s47, s47, 4096")
    A("s_lshl_b32 s25, s30, 6\ns_add_u32 s44, s47, s25\ns_add_u32 s45, s44, 128\ns_add_u32 s46, s44, 256")
    A("s_cmp_eq_u32 s30, 0\ns_cselect_b32 s25, 384, 0\ns_add_u32 s47, s47, s25")
    A("s_sub_u32 s12, s28, 4096\ns_subb_u32 s13, s29, 0")
    A(f"s_mov_b32 s14, {hex(7*MB+4096)}\ns_mov_b32 s15, 0x20000")
    dma_regs(7168, 44)
    A("v_lshrrev_b32 v1, 2, v0\nv_and_b32 v2, 3, v0\nv_bfe_u32 v3, v0, 4, 1\nv_lshlrev_b32 v3, 1, v3\nv_xor_b32 v2, v2, v3")
    A("v_mul_lo_u32 v1, v1, s26\nv_lshl_add_u32 v1, v2, 4, v1")
    A(f"s_add_u32 s27, s47, s25\ns_sub_u32 s27, s27, 2048\nv_add_u32 v{V_D+6}, s27, v1")
    A("s_mul_i32 s44, s23, 7\ns_cmp_eq_u32 s30, 0\ns_cselect_b32 s25, 6, 0\ns_add_u32 s45, s44, s25\ns_add_u32 s44, s44, s30")
    lz2 = A.label("z2tile")
    A(f"s_cmp_eq_u32 s31, 1\ns_cbranch_scc1 {lz2}")
    VC, T = 226, 228
    mainloop(A, mk_cfg("z1"))
    st.mark()
    srd(A, 40, 6, Z1_OFF, Z1_SZ)
    A(f"s_mul_i32 s25, s24, {2*56*2048}\ns_lshl_b32 s44, s44, 11\ns_lshl_b32 s45, s45, 11\ns_add_u32 s44, s44, s25\ns_add_u32 s45, s45, s25")
    A(f"v_mov_b32 v{VC}, {f32(GC1)}\nv_mov_b32 v{VC+1}, {f32(GC0)}\nv_add_u32 v{V_H}, {56*2048}, v{V_P}")
    A("s_nop 7")
    for jp in range(7):
        for i in range(4):
            r0, r1 = 32 * jp + 4 * i, 32 * jp + 16 + 4 * i
            gelu_block(A, [r0, r0 + 2, r1, r1 + 2], T, VC)
            O = 236 + 4 * (i & 1)
            A(f"v_cvt_pk_bf16_f32 v{O}, v{r0}, v{r0+1}\nv_cvt_pk_bf16_f32 v{O+1}, v{r0+2}, v{r0+3}")
            A(f"v_cvt_pk_bf16_f32 v{O+2}, v{r1}, v{r1+1}\nv_cvt_pk_bf16_f32 v{O+3}, v{r1+2}, v{r1+3}")
            A(f"buffer_store_dwordx4 v[{O}:{O+3}], v{V_H if i >> 1 else V_P}, s[40:43], s{44 if jp < 6 else 45} offen offset:{1024*(i&1)}")
        if jp < 5:
            A("s_add_u32 s44, s44, 2048")
    st.flush(6, 3)
    A("s_endpgm")
    A(f"{lz2}:")
    st.n = n0
    mainloop(A, mk_cfg("z2"))
    st.mark()
    z2_epilogue(A, V_P, V_L, VC, T)
    st.flush(6, 3)
    A(f"{end}:\ns_endpgm")
    return kernel_desc(name, 256 + PB + 2 * R * 20, 256), f"; @launch kernel={name} grid=(256,1,1) block=(256,1,1) lds={R*SLOT}"


def z2_epilogue(A, V_P, V_L, VC, T):
    srd(A, 40, 6, Z2_OFF, Z2_SZ)
    srd(A, 48, 6, ST_OFF, ST_SZ)
    A(f"v_mov_b32 v{VC}, {f32(GC1)}\nv_mov_b32 v{VC+1}, {f32(GC0)}")
    A("s_waitcnt vmcnt(0) lgkmcnt(0)\ns_barrier")
    for j in range(14):
        for i2 in range(2):
            r0 = 16 * j + 8 * i2
            gelu_block(A, [r0, r0 + 2, r0 + 4, r0 + 6], T, VC)
    A(f"v_lshrrev_b32 v{T+8}, 4, v{V_L}\ns_lshl_b32 s25, s3, 11\nv_lshlrev_b32 v{T+8}, 6, v{T+8}\nv_add_u32 v{T+8}, s25, v{T+8}")
    pr = lambda b: f"v[{b}:{b+1}]"
    for i in range(4):
        for hp in range(2):
            x0, x1 = 4 * i + 2 * hp, 16 + 4 * i + 2 * hp
            A(f"v_pk_add_f32 {pr(T+2*hp)}, {pr(x0)}, {pr(x1)}")
            A(f"v_pk_mul_f32 {pr(T+4+2*hp)}, {pr(x0)}, {pr(x0)}")
        for j in range(1, 14):
            for hp in range(2):
                x = 16 * j + 4 * i + 2 * hp
                if j > 1:
                    A(f"v_pk_add_f32 {pr(T+2*hp)}, {pr(T+2*hp)}, {pr(x)}")
                A(f"v_pk_fma_f32 {pr(T+4+2*hp)}, {pr(x)}, {pr(x)}, {pr(T+4+2*hp)}")
        A("s_nop 1")
        for sh in (8, 4, 2, 1):
            for r in range(8):
                A(f"v_add_f32_dpp v{T+r}, v{T+r}, v{T+r} row_ror:{sh} row_mask:0xf bank_mask:0xf")
        for r in range(4):
            off = (32 * (i >> 1) + 2 * r + (i & 1)) * 8
            A(f"ds_write2_b32 v{T+8}, v{T+r}, v{T+4+r} offset0:{off//4} offset1:{off//4+1}")
    A(f"v_lshlrev_b32 v{T+9}, 3, v{V_L}\nv_add_u32 v{T+10}, s25, v{T+9}")
    A("s_waitcnt lgkmcnt(0)")
    A(f"ds_read_b64 v[{T}:{T+1}], v{T+10}")
    A("s_lshl_b32 s26, s24, 12\ns_lshl_b32 s27, s23, 9\ns_add_u32 s27, s27, s26")
    A("s_waitcnt lgkmcnt(0)")
    A(f"v_and_b32 v{T+1}, 0x7fffffff, v{T+1}")
    A(f"buffer_store_dwordx2 v[{T}:{T+1}], v{T+9}, s[48:51], s27 offen sc1")
    L = T + 12
    A(f"v_lshrrev_b32 v{T+11}, 4, v{V_L}\nv_lshlrev_b32 v{T+11}, 6, v{T+11}\nv_add_u32 v{T+11}, s25, v{T+11}")
    poll = A.label("poll")
    A(f"{poll}:")
    for ct in range(8):
        A(f"buffer_load_dwordx2 v[{L+2*ct}:{L+2*ct+1}], v{T+9}, s[48:51], s26 offen offset:{512*ct} sc1")
    A("s_waitcnt vmcnt(0)")
    A(f"v_or_b32 v{T}, v{L+1}, v{L+3}")
    for ct in range(2, 8, 2):
        A(f"v_or3_b32 v{T}, v{T}, v{L+2*ct+1}, v{L+2*ct+3}")
    A(f"v_cmp_gt_i32 vcc, 0, v{T}")
    A("s_nop 0\ns_cmp_lg_u64 vcc, 0")
    A(f"s_cbranch_scc1 {poll}")
    for ct in range(1, 8):
        A(f"v_pk_add_f32 {pr(L)}, {pr(L)}, {pr(L+2*ct)}")
    A(f"v_mul_f32 v{L}, {f32(1/1792)}, v{L}\nv_mul_f32 v{L+1}, {f32(1/1792)}, v{L+1}")
    A(f"v_fma_f32 v{L+1}, -v{L}, v{L}, v{L+1}\nv_max_f32 v{L+1}, 0, v{L+1}")
    ln_scalars(A, L, L + 1, L + 2)
    A(f"v_mul_f32 v{L+3}, v{L}, v{L+2}\nv_sub_f32 v{L+3}, 0, v{L+3}")
    A(f"ds_write_b64 v{T+10}, v[{L+2}:{L+3}]")
    A(f"s_mul_i32 s26, s24, 4096\ns_lshl_b32 s44, s44, 17\ns_lshl_b32 s45, s45, 17\ns_add_u32 s44, s44, s26\ns_add_u32 s45, s45, s26")
    for al in range(2):
        A("s_waitcnt lgkmcnt(0)")
        for q in range(4):
            A(f"ds_read_b128 v[{L+4*q}:{L+4*q+3}], v{T+11} offset:{256*al+16*q}")
        A("s_waitcnt lgkmcnt(0)")
        A("s_mov_b32 s46, s44")
        for j in range(14):
            O = T + 4 * (j & 1)
            for r in range(4):
                x0, x1 = 16 * j + 8 * al + r, 16 * j + 8 * al + 4 + r
                A(f"v_fma_f32 v{x0}, v{x0}, v{L+4*r}, v{L+4*r+1}\nv_fma_f32 v{x1}, v{x1}, v{L+4*r+2}, v{L+4*r+3}")
            for r in range(4):
                x0, x1 = 16 * j + 8 * al + r, 16 * j + 8 * al + 4 + r
                A(f"v_cvt_pk_bf16_f32 v{O+r}, v{x0}, v{x1}")
            A(f"buffer_store_dwordx4 v[{O}:{O+3}], v{V_P}, s[40:43], s{46 if j < 12 else 45} offen offset:{2048*al+1024*(j&1)}")
            if j & 1 and j < 11:
                A("s_add_u32 s46, s46, 0x20000")


def attn_epilogue(A, acc, V_L):
    srd(A, 40, 6, P3_OFF, P3_SZ)
    T = 224
    IK, JQ, M0, VO = T, T + 1, T + 2, T + 4
    A(f"v_lshrrev_b32 v{IK}, 4, v{V_L}\nv_lshlrev_b32 v{IK}, 2, v{IK}\nv_and_b32 v{JQ}, 15, v{V_L}\nv_lshlrev_b32 v{VO}, 4, v{V_L}")
    A(f"v_sub_u32 v{T+5}, v{IK}, v{JQ}")
    SEL, VREG, VH0, VH1 = 44, 52, 60, 68
    A("s_cmp_eq_u32 s24, 0\ns_cselect_b64 s[26:27], 0, -1")
    for r in range(4):
        A(f"v_cmp_ge_i32 s[{SEL+2*r}:{SEL+2*r+1}], {-r}, v{T+5}")
        A(f"v_cmp_le_i32 s[30:31], {-7-r}, v{T+5}")
        A(f"v_cmp_le_i32 s[32:33], {9-r}, v{T+5}")
        A(f"v_cmp_ge_i32 vcc, {7-r}, v{IK}")
        A("s_nop 3")
        A(f"s_and_b64 s[30:31], s[30:31], s[{SEL+2*r}:{SEL+2*r+1}]")
        A(f"s_or_b64 s[{VREG+2*r}:{VREG+2*r+1}], s[30:31], s[32:33]")
        A(f"s_and_b64 s[32:33], s[32:33], s[26:27]\ns_or_b64 s[{VH1+2*r}:{VH1+2*r+1}], s[30:31], s[32:33]")
        A(f"s_andn2_b64 s[32:33], vcc, s[{SEL+2*r}:{SEL+2*r+1}]\ns_and_b64 s[32:33], s[32:33], s[26:27]")
        A(f"s_or_b64 s[{VH0+2*r}:{VH0+2*r+1}], s[30:31], s[32:33]")
    A(f"v_mov_b32 v{T+5}, 0xffff\nv_mov_b32 v{T+6}, 0xffff0000")
    for h in range(2):
        A(f"v_cndmask_b32 v{M0+h}, 0, v{T+5}, s[{SEL+4*h}:{SEL+4*h+1}]")
        A(f"v_cndmask_b32 v{T+7}, 0, v{T+6}, s[{SEL+4*h+2}:{SEL+4*h+3}]")
        A(f"v_or_b32 v{M0+h}, v{M0+h}, v{T+7}")
    NEG = T + 5
    A(f"v_mov_b32 v{NEG}, {f32(-1e9)}")
    A(f"s_mul_i32 s25, s24, {2*88*2048}\ns_lshl_b32 s26, s23, 12\ns_add_u32 s25, s25, s26\ns_add_u32 s26, s25, {88*2048}")
    A(f"s_mov_b32 s30, {f32(32 ** -0.5)}\ns_mov_b32 s31, {f32(math.log2(math.e))}")
    for hl in range(2):
        jq, jk, jv = 2 * hl, 4 + 2 * hl, 8 + 2 * hl
        for j0, n in ((jq, 4), (jk, 5)):
            for i in range(n):
                a0, a1 = acc(j0, i), acc(j0 + 1, i)
                A(f"v_cvt_pk_bf16_f32 v{a0}, v{a0}, v{a0+1}\nv_cvt_pk_bf16_f32 v{a0+1}, v{a0+2}, v{a0+3}")
                A(f"v_cvt_pk_bf16_f32 v{a0+2}, v{a1}, v{a1+1}\nv_cvt_pk_bf16_f32 v{a0+3}, v{a1+2}, v{a1+3}")
        S1 = acc(jq + 1, 0)
        S0 = acc(jk + 1, 0)
        A("s_nop 1")
        for i in range(4):
            prev = 4 if i < 2 else i - 2
            qf, kc, kp = acc(jq, i), acc(jk, i), acc(jk, prev)
            A(f"v_mfma_f32_16x16x32_bf16 v[{S1+4*i}:{S1+4*i+3}], v[{kc}:{kc+3}], v[{qf}:{qf+3}], 0")
            A(f"v_mfma_f32_16x16x32_bf16 v[{S0+4*i}:{S0+4*i+3}], v[{kp}:{kp+3}], v[{qf}:{qf+3}], 0")
        VP = lambda dt, p: T + 8 + (dt * 2 + p) * 6
        for dt in range(2):
            for p in range(2):
                for n, i in enumerate((4, p, 2 + p)):
                    a0 = acc(jv + dt, i)
                    A(f"v_cvt_pk_bf16_f32 v{VP(dt,p)+2*n}, v{a0}, v{a0+1}\nv_cvt_pk_bf16_f32 v{VP(dt,p)+2*n+1}, v{a0+2}, v{a0+3}")
        F = acc(jv, 0)
        for i in range(4):
            for r in range(4):
                A(f"v_cndmask_b32 v{S1+4*i+r}, v{S0+4*i+r}, v{S1+4*i+r}, s[{SEL+2*r}:{SEL+2*r+1}]")
        for n in range(16):
            A(f"v_cvt_pk_bf16_f32 v{S1+n}, 0, v{S1+n}")
        for n in range(16):
            A(f"v_mul_f32 v{S1+n}, s30, v{S1+n}")
        for n in range(16):
            A(f"v_cvt_pk_bf16_f32 v{S1+n}, 0, v{S1+n}")
        for i in range(4):
            vm = (VH0, VH1, VREG, VREG)[i]
            for r in range(4):
                A(f"v_cndmask_b32 v{S1+4*i+r}, v{NEG}, v{S1+4*i+r}, s[{vm+2*r}:{vm+2*r+1}]")

        def reduce4(op, mid):
            A("s_nop 1")
            A(f"v_permlane16_swap_b32 v{F}, v{F+1}\nv_permlane16_swap_b32 v{F+2}, v{F+3}")
            A("s_nop 1")
            A(f"{op} v{F}, v{F}, v{F+1}\n{op} v{F+2}, v{F+2}, v{F+3}")
            A("s_nop 1")
            A(f"v_permlane32_swap_b32 v{F}, v{F+2}")
            A("s_nop 1")
            A(f"{op} v{F}, v{F}, v{F+2}")
            mid()
            A(f"v_mov_b32 v{F+2}, v{F}")
            A("s_nop 1")
            A(f"v_permlane32_swap_b32 v{F}, v{F+2}")
            A("s_nop 1")
            A(f"v_mov_b32 v{F+1}, v{F}\nv_mov_b32 v{F+3}, v{F+2}")
            A("s_nop 1")
            A(f"v_permlane16_swap_b32 v{F}, v{F+1}\nv_permlane16_swap_b32 v{F+2}, v{F+3}")
            A("s_nop 1")
        for i in range(4):
            A(f"v_max3_f32 v{F+i}, v{S1+4*i}, v{S1+4*i+1}, v{S1+4*i+2}")
        for i in range(4):
            A(f"v_max_f32 v{F+i}, v{F+i}, v{S1+4*i+3}")
        reduce4("v_max_f32", lambda: None)
        for n in range(16):
            A(f"v_sub_f32 v{S1+n}, v{S1+n}, v{F+n//4}")
        for n in range(16):
            A(f"v_mul_f32 v{S1+n}, s31, v{S1+n}")
        for n in range(16):
            A(f"v_exp_f32 v{S1+n}, v{S1+n}")
        for i in range(4):
            A(f"v_add_f32 v{F+i}, v{S1+4*i}, v{S1+4*i+1}")
        for r in (2, 3):
            for i in range(4):
                A(f"v_add_f32 v{F+i}, v{F+i}, v{S1+4*i+r}")
        reduce4("v_add_f32", lambda: A(f"v_rcp_f32 v{F}, v{F}\ns_nop 0"))
        for n in range(16):
            A(f"v_mul_f32 v{S1+n}, v{S1+n}, v{F+n//4}")
        for i in range(4):
            for h in range(2):
                A(f"v_cvt_pk_bf16_f32 v{S0+4*i+2+h}, v{S1+4*i+2*h}, v{S1+4*i+2*h+1}")
        for i in range(4):
            for h in range(2):
                A(f"v_bfi_b32 v{S0+4*i+h}, v{M0+h}, 0, v{S0+4*i+2+h}")
                A(f"v_and_b32 v{S0+4*i+2+h}, v{M0+h}, v{S0+4*i+2+h}")
        O = F + 8
        A("s_nop 1")
        for i in range(4):
            for dt in range(2):
                vf = VP(dt, i & 1) + 2 * (i >> 1)
                A(f"v_mfma_f32_16x16x32_bf16 v[{O+8*i+4*dt}:{O+8*i+4*dt+3}], v[{vf}:{vf+3}], v[{S0+4*i}:{S0+4*i+3}], 0")
        A("s_nop 7")
        for i in range(4):
            for n in range(4):
                A(f"v_cvt_pk_bf16_f32 v{S1+4*i+n}, v{O+8*i+2*n}, v{O+8*i+2*n+1}")
            A(f"buffer_store_dwordx4 v[{S1+4*i}:{S1+4*i+3}], v{VO}, s[40:43], s{25+(i>>1)} offen offset:{2048*hl+1024*(i&1)}")


def build(which=("k0", "k1", "k2", "k3"), **kw):
    A = Asm()
    A('.amdgcn_target "amdgcn-amd-amdhsa--gfx950"\n.text')
    descs, launches = [], []
    gens = dict(k0=gen_k0, k1=gen_k1, k2=gen_k2, k3=gen_k3)
    for k in which:
        d, l = gens[k](A, **kw.get(k, {}))
        descs.append(d)
        launches.append(l)
    head = open("cdna_kernels/" + NAME + ".s.ref").read().split("; Override launch")[0]
    return head + "\n".join(launches) + "\n" + A.text() + '.section .rodata,"a"\n' + "".join(descs)


if __name__ == "__main__":
    ap = argparse.ArgumentParser()
    ap.add_argument("-o", default="cdna_kernels/" + NAME + ".s")
    ap.add_argument("--opt", default="")
    ap.add_argument("--which", default="k0,k1,k2,k3")
    ap.add_argument("--kw", default="{}")
    a = ap.parse_args()
    for o in a.opt.split(","):
        if o:
            OPT[o] = True
    open(a.o, "w").write(build(a.which.split(","), **eval(a.kw)))
```
